```python
import torch

def _softmax(x, axis=-1):
    return torch.softmax(x, dim=axis)
def _gelu(x):
    return torch.nn.functional.gelu(x, approximate="tanh")
def _silu(x):
    return torch.nn.functional.silu(x)
def _sigmoid(x):
    return torch.sigmoid(x)
def _layernorm(x, axis=-1, eps=1e-5):
    m = x.mean(dim=axis, keepdim=True)
    v = x.var(dim=axis, keepdim=True, unbiased=False)
    return (x - m) / torch.sqrt(v + eps)
def _scatter_add(tgt, idx, src, axis=0):
    return tgt.clone().index_add_(axis, idx, src)
def _segment_sum(src, seg, n):
    out = torch.zeros((n,) + src.shape[1:], dtype=src.dtype)
    return out.index_add_(0, seg, src)
def _pad(x, pw):
    flat = tuple(v for pair in reversed(pw) for v in pair)
    return torch.nn.functional.pad(x, flat)

kernel_name = 'standalone__rezero__sampling'

def setup_inputs():

    _w = (lambda a: (lambda t: t.to(torch.bfloat16) if t.is_floating_point() else t)(torch.as_tensor(a)))
    B, S, D = 1024, 16, 448
    return {
        "x": _w((lambda *s: torch.randn(*s, dtype=torch.bfloat16) * 0.05)(B, S, D)),
        "fx": _w((lambda *s: torch.randn(*s, dtype=torch.bfloat16) * 0.8)(B, S, D)),
        "alpha": _w((lambda *s: torch.randn(*s, dtype=torch.bfloat16) * 0.8)(1) * 0.1),
    }

def reference(x, fx, alpha):
    return x + alpha * fx
```

```python
import sys, argparse

HEADER = """; Kernarg layout for this problem (48 bytes, ptrs only, base s[0:1]):
; @launch grid=({grid},1,1) block=({block},1,1) lds={lds}
.amdgcn_target "amdgcn-amd-amdhsa--gfx950"
.text
.globl standalone__rezero__sampling_kernel
.p2align 8
.type standalone__rezero__sampling_kernel,@function
standalone__rezero__sampling_kernel:
"""

FOOTER = """.section .rodata,"a"
.p2align 6
.amdhsa_kernel standalone__rezero__sampling_kernel
  .amdhsa_next_free_vgpr {vgpr}
  .amdhsa_next_free_sgpr {sgpr}
  .amdhsa_accum_offset {accum}
  .amdhsa_group_segment_fixed_size 0
  .amdhsa_kernarg_size 48
  .amdhsa_user_sgpr_count 2
  .amdhsa_user_sgpr_kernarg_segment_ptr 1
  .amdhsa_system_sgpr_workgroup_id_x 1
  .amdhsa_float_denorm_mode_32 3
.end_amdhsa_kernel
"""

NBYTES = 1024 * 16 * 448 * 2


def compute(xr, fr, tmp, alpha_pair="s[16:17]", mask="s18"):
    out = []
    for d in range(4):
        x = xr + d
        f = fr + d
        t0, t1, u0, u1 = tmp, tmp + 1, tmp + 2, tmp + 3
        out.append(f"v_lshlrev_b32 v{t0}, 16, v{f}")
        out.append(f"v_and_b32 v{t1}, {mask}, v{f}")
        out.append(f"v_pk_mul_f32 v[{t0}:{t1}], v[{t0}:{t1}], {alpha_pair} op_sel_hi:[1,0]")
        out.append(f"v_lshlrev_b32 v{u0}, 16, v{x}")
        out.append(f"v_and_b32 v{u1}, {mask}, v{x}")
        out.append(f"v_cvt_pk_bf16_f32 v{t0}, 0, v{t0}")
        out.append(f"v_cvt_pk_bf16_f32 v{t1}, 0, v{t1}")
        out.append(f"v_pk_add_f32 v[{u0}:{u1}], v[{u0}:{u1}], v[{t0}:{t1}]")
        out.append(f"v_cvt_pk_bf16_f32 v{x}, v{u0}, v{u1}")
    return out


def sfx(f):
    return (" " + f) if f else ""


def gen_simple(block=256, U=1, ld="", st="", lds=0, stamps=False, strided=False):
    wg_bytes = block * 16 * U
    assert NBYTES % wg_bytes == 0
    grid = NBYTES // wg_bytes
    L = []
    if stamps:
        L.append("s_memrealtime s[40:41]")
        L.append("s_load_dwordx2 s[56:57], s[0:1], 40")
    L.append("s_load_dwordx2 s[4:5], s[0:1], 0")
    L.append("s_load_dwordx2 s[8:9], s[0:1], 8")
    L.append("s_load_dwordx2 s[12:13], s[0:1], 24")
    L.append("s_load_dwordx2 s[20:21], s[0:1], 16")
    L.append(f"s_mov_b32 s6, {NBYTES}")
    L.append("s_mov_b32 s7, 0x20000")
    L.append(f"s_mov_b32 s10, {NBYTES}")
    L.append("s_mov_b32 s11, 0x20000")
    L.append(f"s_mov_b32 s14, {NBYTES}")
    L.append("s_mov_b32 s15, 0x20000")
    L.append(f"s_mul_i32 s3, s2, {block*16 if strided else wg_bytes}")
    if stamps:
        L.append("v_lshrrev_b32 v1, 6, v0")
    L.append("v_lshl_add_u32 v0, v0, 4, s3")
    L.append("s_mov_b32 s18, 0xffff0000")
    step = block * 16 * (grid if strided else 1)
    soffs = []
    for j in range(U):
        off = j * step
        hi, lo = off // 4096 * 4096, off % 4096
        soffs.append((hi, lo))
    his = sorted(set(h for h, _ in soffs if h))
    sreg = {0: "0"}
    nxt = 24
    for h in his:
        L.append(f"s_mov_b32 s{nxt}, {h}")
        sreg[h] = f"s{nxt}"
        nxt += 1
    L.append("s_waitcnt lgkmcnt(0)")
    if stamps:
        L.append("s_memrealtime s[42:43]")
    L.append("s_load_dword s16, s[20:21], 0")
    base = 8
    xr = [base + 8 * j for j in range(U)]
    fr = [base + 8 * j + 4 for j in range(U)]
    for j in range(U):
        hi, lo = soffs[j]
        o = f" offset:{lo}" if lo else ""
        L.append(f"buffer_load_dwordx4 v[{xr[j]}:{xr[j]+3}], v0, s[4:7], {sreg[hi]} offen{o}{sfx(ld)}")
        L.append(f"buffer_load_dwordx4 v[{fr[j]}:{fr[j]+3}], v0, s[8:11], {sreg[hi]} offen{o}{sfx(ld)}")
    L.append("s_waitcnt lgkmcnt(0)")
    if stamps:
        L.append("s_memrealtime s[44:45]")
    L.append("s_lshl_b32 s16, s16, 16")
    for j in range(U):
        n = (2 * U - 2 * (j + 1)) + j
        L.append(f"s_waitcnt vmcnt({min(n,63)})")
        if stamps and j == 0:
            L.append("s_memrealtime s[46:47]")
        if stamps and j == U - 1:
            L.append("s_memrealtime s[48:49]")
        L += compute(xr[j], fr[j], 4)
        hi, lo = soffs[j]
        o = f" offset:{lo}" if lo else ""
        L.append(f"buffer_store_dwordx4 v[{xr[j]}:{xr[j]+3}], v0, s[12:15], {sreg[hi]} offen{o}{sfx(st)}")
    if stamps:
        L += stamp_tail(block)
        nxt = 64
    L.append("s_endpgm")
    vg = base + 8 * U
    sg = max(nxt, 24)
    return grid, block, lds, L, vg, sg


def gen_pipe(block=256, n=7, D=2, ld="nt", st="", lds=0, stamps=False, strided=False):
    wg_bytes = block * 16 * n
    assert NBYTES % wg_bytes == 0
    grid = NBYTES // wg_bytes
    step = block * 16 * (grid if strided else 1)
    D = min(D, n)
    L = []
    if stamps:
        L.append("s_memrealtime s[40:41]")
        L.append("s_load_dwordx2 s[56:57], s[0:1], 40")
    L.append("s_load_dwordx2 s[4:5], s[0:1], 0")
    L.append("s_load_dwordx2 s[8:9], s[0:1], 8")
    L.append("s_load_dwordx2 s[12:13], s[0:1], 24")
    L.append("s_load_dwordx2 s[20:21], s[0:1], 16")
    L.append(f"s_mov_b32 s6, {NBYTES}")
    L.append("s_mov_b32 s7, 0x20000")
    L.append(f"s_mov_b32 s10, {NBYTES}")
    L.append("s_mov_b32 s11, 0x20000")
    L.append(f"s_mov_b32 s14, {NBYTES}")
    L.append("s_mov_b32 s15, 0x20000")
    L.append(f"s_mul_i32 s24, s2, {block*16 if strided else wg_bytes}")
    L.append("s_mov_b32 s25, s24")
    if stamps:
        L.append("v_lshrrev_b32 v1, 6, v0")
    L.append("v_lshlrev_b32 v0, 4, v0")
    L.append("s_mov_b32 s18, 0xffff0000")
    L.append("s_waitcnt lgkmcnt(0)")
    if stamps:
        L.append("s_memrealtime s[42:43]")
    L.append("s_load_dword s16, s[20:21], 0")
    base = 8
    xr = [base + 8 * j for j in range(D)]
    fr = [base + 8 * j + 4 for j in range(D)]
    ops = []
    def load(j):
        s_ = j % D
        L.append(f"buffer_load_dwordx4 v[{xr[s_]}:{xr[s_]+3}], v0, s[4:7], s24 offen{sfx(ld)}")
        L.append(f"buffer_load_dwordx4 v[{fr[s_]}:{fr[s_]+3}], v0, s[8:11], s24 offen{sfx(ld)}")
        ops.append(("L", j)); ops.append(("L", j))
        if j + 1 < n:
            L.append(f"s_add_u32 s24, s24, {step}")
    for j in range(D):
        load(j)
    L.append("s_waitcnt lgkmcnt(0)")
    if stamps:
        L.append("s_memrealtime s[44:45]")
    L.append("s_lshl_b32 s16, s16, 16")
    for j in range(n):
        last = max(k for k, o in enumerate(ops) if o == ("L", j))
        cnt = len(ops) - 1 - last
        L.append(f"s_waitcnt vmcnt({min(cnt,63)})")
        if stamps and j == 0:
            L.append("s_memrealtime s[46:47]")
        if stamps and j == n - 1:
            L.append("s_memrealtime s[48:49]")
        s_ = j % D
        L += compute(xr[s_], fr[s_], 4)
        L.append(f"buffer_store_dwordx4 v[{xr[s_]}:{xr[s_]+3}], v0, s[12:15], s25 offen{sfx(st)}")
        ops.append(("S", j))
        if j + 1 < n:
            L.append(f"s_add_u32 s25, s25, {step}")
        if j + D < n:
            load(j + D)
    nxt = 26
    if stamps:
        L += stamp_tail(block)
        nxt = 64
    L.append("s_endpgm")
    vg = base + 8 * D
    return grid, block, lds, L, vg, nxt


def gen_loop(block=256, n=14, D=2, ld="nt", st="", lds=0, stamps=False):
    chunk = block * 16
    assert NBYTES % (chunk * n) == 0
    grid = NBYTES // (chunk * n)
    step = chunk * grid
    L = []
    if stamps:
        L.append("s_memrealtime s[40:41]")
        L.append("s_load_dwordx2 s[56:57], s[0:1], 40")
    L.append("s_load_dwordx4 s[4:7], s[0:1], 0")
    L.append("s_load_dwordx4 s[8:11], s[0:1], 16")
    L.append(f"s_cmp_ge_u32 s2, {grid}")
    L.append("s_cbranch_scc1 L_end")
    L.append(f"s_mul_i32 s24, s2, {chunk}")
    if stamps:
        L.append("v_lshrrev_b32 v1, 6, v0")
    L.append("v_lshlrev_b32 v0, 4, v0")
    L.append(f"s_mov_b32 s14, {NBYTES}")
    L.append("s_mov_b32 s15, 0x20000")
    L.append(f"s_mov_b32 s22, {NBYTES}")
    L.append("s_mov_b32 s23, 0x20000")
    L.append(f"s_mov_b32 s30, {NBYTES}")
    L.append("s_mov_b32 s31, 0x20000")
    L.append("s_mov_b32 s18, 0xffff0000")
    L.append(f"s_mov_b32 s19, {step}")
    L.append("s_mov_b32 s25, s24")
    L.append("s_waitcnt lgkmcnt(0)")
    if stamps:
        L.append("s_memrealtime s[42:43]")
    L.append("s_load_dword s16, s[8:9], 0")
    L.append("s_mov_b64 s[12:13], s[4:5]")
    L.append("s_mov_b64 s[20:21], s[6:7]")
    L.append("s_mov_b64 s[28:29], s[10:11]")
    base = 8
    xr = [base + 8 * j for j in range(D)]
    fr = [base + 8 * j + 4 for j in range(D)]
    def load(s_):
        L.append(f"buffer_load_dwordx4 v[{xr[s_]}:{xr[s_]+3}], v0, s[12:15], s24 offen{sfx(ld)}")
        L.append(f"buffer_load_dwordx4 v[{fr[s_]}:{fr[s_]+3}], v0, s[20:23], s24 offen{sfx(ld)}")
        L.append("s_add_u32 s24, s24, s19")
    for j in range(D):
        load(j)
        if j < D - 1:
            L.append("buffer_load_dword v3, v0, s[12:15], s30 offen")
    L.append("s_waitcnt lgkmcnt(0)")
    if stamps:
        L.append("s_memrealtime s[44:45]")
        L.append("s_memrealtime s[46:47]")
    L.append("s_lshl_b32 s16, s16, 16")
    L.append("L_loop:")
    for s_ in range(D):
        L.append(f"s_waitcnt vmcnt({3*(D-1)})")
        if stamps:
            L.append("s_memrealtime s[48:49]")
        L += compute(xr[s_], fr[s_], 4)
        L.append(f"buffer_store_dwordx4 v[{xr[s_]}:{xr[s_]+3}], v0, s[28:31], s25 offen{sfx(st)}")
        L.append("s_add_u32 s25, s25, s19")
        L.append("s_cmp_ge_u32 s25, s30")
        if s_ < D - 1:
            L.append("s_cbranch_scc1 L_done")
            load(s_)
        else:
            L.append("s_cbranch_scc1 L_done")
            load(s_)
            L.append("s_branch L_loop")
    L.append("L_done:")
    nxt = 32
    if stamps:
        L += stamp_tail(block)
        nxt = 64
    L.append("L_end:")
    L.append("s_endpgm")
    vg = base + 8 * D
    return grid, block, lds, L, vg, nxt


def gen_map(block=256, n=14, D=4, ld="nt", st="", stamps=False, mapping="strided", ro=False, warm=""):
    chunk = block * 16
    assert NBYTES % (chunk * n) == 0
    grid = NBYTES // (chunk * n)
    D = min(D, n)
    L = []
    if stamps:
        L.append("s_memrealtime s[40:41]")
        L.append("s_load_dwordx2 s[56:57], s[0:1], 40")
    L.append("s_load_dwordx2 s[4:5], s[0:1], 0")
    L.append("s_load_dwordx2 s[8:9], s[0:1], 8")
    L.append("s_load_dwordx2 s[12:13], s[0:1], 24")
    L.append("s_load_dwordx2 s[20:21], s[0:1], 16")
    L.append(f"s_cmp_ge_u32 s2, {grid}")
    L.append("s_cbranch_scc1 L_end")
    for r in (6, 10, 14):
        L.append(f"s_mov_b32 s{r}, {NBYTES}")
    for r in (7, 11, 15):
        L.append(f"s_mov_b32 s{r}, 0x20000")
    if mapping == "strided":
        L.append(f"s_mul_i32 s24, s2, {chunk}"); step = chunk * grid
    elif mapping == "blocked":
        L.append(f"s_mul_i32 s24, s2, {chunk*n}"); step = chunk
    elif mapping == "xcd":
        per = grid // 8
        L += ["s_and_b32 s26, s2, 7", "s_lshr_b32 s27, s2, 3", f"s_mul_i32 s26, s26, {NBYTES//8}", f"s_mul_i32 s27, s27, {chunk}", "s_add_u32 s24, s26, s27"]
        step = chunk * per
    elif mapping == "xcdblk":
        L += ["s_and_b32 s26, s2, 7", "s_lshr_b32 s27, s2, 3", f"s_mul_i32 s26, s26, {NBYTES//8}", f"s_mul_i32 s27, s27, {chunk*n}", "s_add_u32 s24, s26, s27"]
        step = chunk
    elif mapping == "xcdrev":
        per = grid // 8
        raise NotImplementedError
    elif mapping == "iod":
        per = grid // 2
        L += ["s_lshr_b32 s26, s2, 2", "s_and_b32 s26, s26, 1", f"s_mul_i32 s26, s26, {NBYTES//2}",
              "s_lshr_b32 s27, s2, 3", "s_lshl_b32 s27, s27, 2", "s_and_b32 s28, s2, 3", "s_or_b32 s27, s27, s28", f"s_mul_i32 s27, s27, {chunk}", "s_add_u32 s24, s26, s27"]
        step = chunk * per
    elif mapping == "xcdint":
        per = grid // 8
        L += ["s_and_b32 s26, s2, 7", "s_lshr_b32 s27, s2, 3", f"s_mul_i32 s26, s26, {per}", "s_add_u32 s26, s26, s27", f"s_mul_i32 s24, s26, {chunk}"]
        step = chunk * grid
    L.append("s_mov_b32 s25, s24")
    if stamps:
        L.append("v_lshrrev_b32 v1, 6, v0")
    L.append("v_lshlrev_b32 v0, 4, v0")
    L.append("s_mov_b32 s18, 0xffff0000")
    L.append("s_waitcnt lgkmcnt(0)")
    if stamps:
        L.append("s_memrealtime s[42:43]")
    L.append("s_load_dword s16, s[20:21], 0")
    base = 8
    xr = [base + 8 * j for j in range(D)]
    fr = [base + 8 * j + 4 for j in range(D)]
    ops = []
    def load(j):
        s_ = j % D
        L.append(f"buffer_load_dwordx4 v[{xr[s_]}:{xr[s_]+3}], v0, s[4:7], s24 offen{sfx(ld)}")
        L.append(f"buffer_load_dwordx4 v[{fr[s_]}:{fr[s_]+3}], v0, s[8:11], s24 offen{sfx(ld)}")
        ops.append(("L", j)); ops.append(("L", j))
        if j + 1 < n:
            L.append(f"s_add_u32 s24, s24, {step}")
    for j in range(D):
        load(j)
        if j == 0 and warm:
            L.append(f"s_add_u32 s29, s25, {step*(n-1)}")
            L.append("v_mov_b32 v2, 0")
            if "i" in warm:
                L.append("buffer_load_dword v3, v2, s[4:7], s29 offen nt"); ops.append(("W", 0))
                L.append("buffer_load_dword v3, v2, s[8:11], s29 offen nt"); ops.append(("W", 1))
            if "o" in warm:
                L.append("buffer_load_dword v3, v2, s[12:15], s25 offen nt"); ops.append(("W", 2))
                L.append("buffer_load_dword v3, v2, s[12:15], s29 offen nt"); ops.append(("W", 3))
    L.append("s_waitcnt lgkmcnt(0)")
    if stamps:
        L.append("s_memrealtime s[44:45]")
    L.append("s_lshl_b32 s16, s16, 16")
    for j in range(n):
        last = max(k for k, o in enumerate(ops) if o == ("L", j))
        cnt = len(ops) - 1 - last
        L.append(f"s_waitcnt vmcnt({min(cnt,63)})")
        if stamps and j == 0:
            L.append("s_memrealtime s[46:47]")
        if stamps and j == n - 1:
            L.append("s_memrealtime s[48:49]")
        s_ = j % D
        L += compute(xr[s_], fr[s_], 4)
        if not ro:
            L.append(f"buffer_store_dwordx4 v[{xr[s_]}:{xr[s_]+3}], v0, s[12:15], s25 offen{sfx(st)}")
            ops.append(("S", j))
        if j + 1 < n:
            L.append(f"s_add_u32 s25, s25, {step}")
        if j + D < n:
            load(j + D)
    nxt = 30
    if stamps:
        L += stamp_tail(block)
        nxt = 64
    L.append("L_end:")
    L.append("s_endpgm")
    vg = base + 8 * D
    return grid, block, 0, L, vg, nxt


def gen_dma(block=256, n=14, D=4, ld="nt", st="", stamps=False, mapping="xcd", ro=False):
    chunk = block * 16
    assert NBYTES % (chunk * n) == 0
    grid = NBYTES // (chunk * n)
    D = min(D, n)
    nw = block // 64
    lds = nw * D * 2048
    L = []
    if stamps:
        L.append("s_memrealtime s[40:41]")
        L.append("s_load_dwordx2 s[56:57], s[0:1], 40")
    L.append("s_load_dwordx2 s[4:5], s[0:1], 0")
    L.append("s_load_dwordx2 s[8:9], s[0:1], 8")
    L.append("s_load_dwordx2 s[12:13], s[0:1], 24")
    L.append("s_load_dwordx2 s[20:21], s[0:1], 16")
    L.append(f"s_cmp_ge_u32 s2, {grid}")
    L.append("s_cbranch_scc1 L_end")
    L.append("v_lshrrev_b32 v1, 6, v0")
    for r in (6, 10, 14):
        L.append(f"s_mov_b32 s{r}, {NBYTES}")
    L.append("v_readfirstlane_b32 s30, v1")
    for r in (7, 11, 15):
        L.append(f"s_mov_b32 s{r}, 0x20000")
    per = grid // 8
    assert mapping == "xcd"
    L += ["s_and_b32 s26, s2, 7", "s_lshr_b32 s27, s2, 3", f"s_mul_i32 s26, s26, {NBYTES//8}", f"s_mul_i32 s27, s27, {chunk}", "s_add_u32 s24, s26, s27"]
    step = chunk * per
    L.append("s_mov_b32 s25, s24")
    L.append(f"s_mul_i32 s30, s30, {D*2048}")
    L.append("v_and_b32 v2, 63, v0")
    L.append("v_lshlrev_b32 v2, 4, v2")
    L.append("v_add_u32 v2, s30, v2")
    L.append("v_lshlrev_b32 v0, 4, v0")
    L.append("s_mov_b32 s18, 0xffff0000")
    L.append("s_waitcnt lgkmcnt(0)")
    if stamps:
        L.append("s_memrealtime s[42:43]")
    L.append("s_load_dword s16, s[20:21], 0")
    ops = []
    def load(j):
        s_ = j % D
        L.append(f"s_add_u32 m0, s30, {s_*2048}")
        L.append("s_nop 0")
        L.append(f"buffer_load_dwordx4 v0, s[4:7], s24 offen{sfx(ld)} lds")
        L.append(f"s_add_u32 m0, s30, {s_*2048+1024}")
        L.append("s_nop 0")
        L.append(f"buffer_load_dwordx4 v0, s[8:11], s24 offen{sfx(ld)} lds")
        ops.append(("L", j)); ops.append(("L", j))
        if j + 1 < n:
            L.append(f"s_add_u32 s24, s24, {step}")
    for j in range(D):
        load(j)
    L.append("s_waitcnt lgkmcnt(0)")
    if stamps:
        L.append("s_memrealtime s[44:45]")
    L.append("s_lshl_b32 s16, s16, 16")
    for j in range(n):
        last = max(k for k, o in enumerate(ops) if o == ("L", j))
        cnt = len(ops) - 1 - last
        L.append(f"s_waitcnt vmcnt({min(cnt,63)})")
        if stamps and j == 0:
            L.append("s_memrealtime s[46:47]")
        if stamps and j == n - 1:
            L.append("s_memrealtime s[48:49]")
        s_ = j % D
        rx = 8 + 8 * (j % 2)
        L.append(f"ds_read_b128 v[{rx}:{rx+3}], v2 offset:{s_*2048}")
        L.append(f"ds_read_b128 v[{rx+4}:{rx+7}], v2 offset:{s_*2048+1024}")
        L.append("s_waitcnt lgkmcnt(0)")
        if j + D < n:
            load(j + D)
        L += compute(rx, rx + 4, 4)
        if not ro:
            L.append(f"buffer_store_dwordx4 v[{rx}:{rx+3}], v0, s[12:15], s25 offen{sfx(st)}")
            ops.append(("S", j))
        if j + 1 < n:
            L.append(f"s_add_u32 s25, s25, {step}")
    nxt = 32
    if stamps:
        L += stamp_tail(block)
        nxt = 64
    L.append("L_end:")
    L.append("s_endpgm")
    return grid, block, lds, L, 24, nxt


def gen_xloop(block=256, n=14, D=4, ld="nt", st="", stamps=False):
    chunk = block * 16
    assert NBYTES % (chunk * n) == 0
    grid = NBYTES // (chunk * n)
    per = grid // 8
    R = NBYTES // 8
    step = chunk * per
    L = []
    if stamps:
        L.append("s_memrealtime s[40:41]")
        L.append("s_load_dwordx2 s[56:57], s[0:1], 40")
    L.append("s_load_dwordx2 s[4:5], s[0:1], 0")
    L.append("s_load_dwordx2 s[8:9], s[0:1], 8")
    L.append("s_load_dwordx2 s[12:13], s[0:1], 24")
    L.append("s_load_dwordx2 s[20:21], s[0:1], 16")
    L.append(f"s_cmp_ge_u32 s2, {grid}")
    L.append("s_cbranch_scc1 L_end")
    L.append("s_and_b32 s26, s2, 7")
    L.append("s_lshr_b32 s27, s2, 3")
    L.append(f"s_mul_i32 s26, s26, {R}")
    L.append(f"s_mul_i32 s27, s27, {chunk}")
    L.append("s_add_u32 s24, s26, s27")
    L.append(f"s_add_u32 s6, s26, {R}")
    L.append("s_mov_b32 s10, s6")
    L.append("s_mov_b32 s14, s6")
    for r in (7, 11, 15):
        L.append(f"s_mov_b32 s{r}, 0x20000")
    L.append("s_mov_b32 s25, s24")
    if stamps:
        L.append("v_lshrrev_b32 v1, 6, v0")
    L.append("v_lshlrev_b32 v0, 4, v0")
    L.append("s_mov_b32 s18, 0xffff0000")
    L.append(f"s_mov_b32 s19, {step}")
    L.append("s_waitcnt lgkmcnt(0)")
    if stamps:
        L.append("s_memrealtime s[42:43]")
    L.append("s_load_dword s16, s[20:21], 0")
    base = 8
    xr = [base + 8 * j for j in range(D)]
    fr = [base + 8 * j + 4 for j in range(D)]
    def load(s_):
        L.append(f"buffer_load_dwordx4 v[{xr[s_]}:{xr[s_]+3}], v0, s[4:7], s24 offen{sfx(ld)}")
        L.append(f"buffer_load_dwordx4 v[{fr[s_]}:{fr[s_]+3}], v0, s[8:11], s24 offen{sfx(ld)}")
        L.append("s_add_u32 s24, s24, s19")
    for j in range(D):
        load(j)
        if j < D - 1:
            L.append("buffer_load_dword v3, v0, s[4:7], s6 offen")
    L.append("s_waitcnt lgkmcnt(0)")
    if stamps:
        L.append("s_memrealtime s[44:45]")
        L.append("s_memrealtime s[46:47]")
    L.append("s_lshl_b32 s16, s16, 16")
    L.append("L_loop:")
    for s_ in range(D):
        L.append(f"s_waitcnt vmcnt({3*(D-1)})")
        if stamps:
            L.append("s_memrealtime s[48:49]")
        L += compute(xr[s_], fr[s_], 4)
        L.append(f"buffer_store_dwordx4 v[{xr[s_]}:{xr[s_]+3}], v0, s[12:15], s25 offen{sfx(st)}")
        L.append("s_add_u32 s25, s25, s19")
        L.append("s_cmp_ge_u32 s25, s6")
        L.append("s_cbranch_scc1 L_done")
        load(s_)
        if s_ == D - 1:
            L.append("s_branch L_loop")
    L.append("L_done:")
    nxt = 28
    if stamps:
        L += stamp_tail(block)
        nxt = 64
    L.append("L_end:")
    L.append("s_endpgm")
    vg = base + 8 * D
    return grid, block, 0, L, vg, nxt


def gen_phase(block=256, n=14, D=4, ld="nt", st="", stamps=False, ro=False, Dx=None):
    chunk = block * 16
    grid = NBYTES // (chunk * n)
    per = grid // 8
    R = NBYTES // 8
    step = chunk * per
    Dx = Dx or n
    L = []
    if stamps:
        L.append("s_memrealtime s[40:41]")
        L.append("s_load_dwordx2 s[56:57], s[0:1], 40")
    L.append("s_load_dwordx2 s[4:5], s[0:1], 0")
    L.append("s_load_dwordx2 s[8:9], s[0:1], 8")
    L.append("s_load_dwordx2 s[12:13], s[0:1], 24")
    L.append("s_load_dwordx2 s[20:21], s[0:1], 16")
    L.append(f"s_cmp_ge_u32 s2, {grid}")
    L.append("s_cbranch_scc1 L_end")
    for r in (6, 10, 14):
        L.append(f"s_mov_b32 s{r}, {NBYTES}")
    for r in (7, 11, 15):
        L.append(f"s_mov_b32 s{r}, 0x20000")
    L += ["s_and_b32 s26, s2, 7", "s_lshr_b32 s27, s2, 3", f"s_mul_i32 s26, s26, {R}", f"s_mul_i32 s27, s27, {chunk}", "s_add_u32 s24, s26, s27"]
    L.append("s_mov_b32 s25, s24")
    L.append("s_mov_b32 s23, s24")
    if stamps:
        L.append("v_lshrrev_b32 v1, 6, v0")
    L.append("v_lshlrev_b32 v0, 4, v0")
    L.append("s_mov_b32 s18, 0xffff0000")
    L.append("s_waitcnt lgkmcnt(0)")
    if stamps:
        L.append("s_memrealtime s[42:43]")
    L.append("s_load_dword s16, s[20:21], 0")
    base = 8
    xr = [base + 4 * j for j in range(Dx)]
    fb = base + 4 * Dx
    fr = [fb + 4 * j for j in range(D)]
    ops = []
    def loadx(j):
        r = xr[j % Dx]
        L.append(f"buffer_load_dwordx4 v[{r}:{r+3}], v0, s[4:7], s24 offen{sfx(ld)}")
        ops.append(("X", j))
        L.append(f"s_add_u32 s24, s24, {step}")
    def loadf(j):
        r = fr[j % D]
        L.append(f"buffer_load_dwordx4 v[{r}:{r+3}], v0, s[8:11], s23 offen{sfx(ld)}")
        ops.append(("F", j))
        L.append(f"s_add_u32 s23, s23, {step}")
    for j in range(Dx):
        loadx(j)
    for j in range(D):
        loadf(j)
    L.append("s_waitcnt lgkmcnt(0)")
    if stamps:
        L.append("s_memrealtime s[44:45]")
    L.append("s_lshl_b32 s16, s16, 16")
    for j in range(n):
        last = max(k for k, o in enumerate(ops) if o in (("X", j), ("F", j)))
        cnt = len(ops) - 1 - last
        L.append(f"s_waitcnt vmcnt({min(cnt,63)})")
        if stamps and j == 0:
            L.append("s_memrealtime s[46:47]")
        if stamps and j == n - 1:
            L.append("s_memrealtime s[48:49]")
        L += compute(xr[j % Dx], fr[j % D], 4)
        if not ro:
            r = xr[j % Dx]
            L.append(f"buffer_store_dwordx4 v[{r}:{r+3}], v0, s[12:15], s25 offen{sfx(st)}")
            ops.append(("S", j))
        L.append(f"s_add_u32 s25, s25, {step}")
        if j + Dx < n:
            loadx(j + Dx)
        if j + D < n:
            loadf(j + D)
    nxt = 30
    if stamps:
        L += stamp_tail(block)
        nxt = 64
    L.append("L_end:")
    L.append("s_endpgm")
    vg = fb + 4 * D
    return grid, block, 0, L, vg, nxt


def stamp_tail(block):
    L = []
    L.append("s_waitcnt vmcnt(0)")
    L.append("s_memrealtime s[50:51]")
    L.append("s_getreg_b32 s52, hwreg(HW_REG_XCC_ID)")
    L.append("s_getreg_b32 s53, hwreg(HW_REG_HW_ID)")
    L.append(f"s_mul_i32 s54, s2, {block // 64}")
    L.append("v_add_u32 v1, s54, v1")
    L.append("v_lshlrev_b32 v1, 5, v1")
    L.append("s_waitcnt lgkmcnt(0)")
    for i, s in enumerate([40, 42, 44, 46]):
        L.append(f"v_mov_b32 v{4+i}, s{s}")
    L.append("s_mov_b64 exec, 1")
    L.append("global_store_dwordx4 v1, v[4:7], s[56:57]")
    L.append("s_nop 1")
    for i, s in enumerate([48, 50, 52, 53]):
        L.append(f"v_mov_b32 v{8+i}, s{s}")
    L.append("global_store_dwordx4 v1, v[8:11], s[56:57] offset:16")
    return L


def emit(grid, block, lds, L, vg, sg):
    s = HEADER.format(grid=grid, block=block, lds=lds)
    for l in L:
        if l.endswith(":"):
            s += l + "\n"
        else:
            s += "    " + l + "\n"
    accum = (vg + 3) // 4 * 4
    s += FOOTER.format(vgpr=vg, sgpr=sg, accum=accum)
    return s


if __name__ == "__main__":
    ap = argparse.ArgumentParser()
    ap.add_argument("--kind", default="simple")
    ap.add_argument("--block", type=int, default=256)
    ap.add_argument("--U", type=int, default=1)
    ap.add_argument("--ld", default="")
    ap.add_argument("--st", default="")
    ap.add_argument("--lds", type=int, default=0)
    ap.add_argument("--stamps", action="store_true")
    ap.add_argument("--strided", action="store_true")
    ap.add_argument("-o", default="-")
    a = ap.parse_args()
    if a.kind == "simple":
        r = gen_simple(a.block, a.U, a.ld, a.st, a.lds, a.stamps, a.strided)
    s = emit(*r)
    if a.o == "-":
        print(s)
    else:
        open(a.o, "w").write(s)
```

```python
import sys
sys.path.insert(0, "gen")
from gen import NBYTES, sfx, stamp_tail

HEADER = """; Kernarg layout for this problem (48 bytes, ptrs only, base s[0:1]):
; @launch grid=({grid},1,1) block=({block},1,1) lds=0
;
; Loads are issued {D} steps ahead (nt: read-once data), stores are plain.
.amdgcn_target "amdgcn-amd-amdhsa--gfx950"
.text
.globl standalone__rezero__sampling_kernel
.p2align 8
.type standalone__rezero__sampling_kernel,@function
standalone__rezero__sampling_kernel:
"""

FOOTER = """.section .rodata,"a"
.p2align 6
.amdhsa_kernel standalone__rezero__sampling_kernel
  .amdhsa_next_free_vgpr {vgpr}
  .amdhsa_next_free_sgpr {sgpr}
  .amdhsa_accum_offset {accum}
  .amdhsa_group_segment_fixed_size 0
  .amdhsa_kernarg_size 48
  .amdhsa_user_sgpr_count 2
  .amdhsa_user_sgpr_kernarg_segment_ptr 1
  .amdhsa_system_sgpr_workgroup_id_x 1
  .amdhsa_float_denorm_mode_32 3
.end_amdhsa_kernel
"""


def compute(xr, fr, tmp, order="seq"):
    out = []
    if order == "seq":
        for d in range(4):
            x, f = xr + d, fr + d
            t0, t1, u0, u1 = tmp, tmp + 1, tmp + 2, tmp + 3
            out += [f"v_lshlrev_b32 v{t0}, 16, v{f}",
                    f"v_and_b32 v{t1}, s18, v{f}",
                    f"v_pk_mul_f32 v[{t0}:{t1}], v[{t0}:{t1}], s[16:17] op_sel_hi:[1,0]",
                    f"v_lshlrev_b32 v{u0}, 16, v{x}",
                    f"v_and_b32 v{u1}, s18, v{x}",
                    f"v_cvt_pk_bf16_f32 v{t0}, 0, v{t0}",
                    f"v_cvt_pk_bf16_f32 v{t1}, 0, v{t1}",
                    f"v_pk_add_f32 v[{u0}:{u1}], v[{u0}:{u1}], v[{t0}:{t1}]",
                    f"v_cvt_pk_bf16_f32 v{x}, v{u0}, v{u1}"]
    return out


def gen_final(D=4, ld="nt", st="", stamps=False, n=14, block=256):
    chunk = block * 16
    grid = NBYTES // (chunk * n)
    per = grid // 8
    step = chunk * per
    assert step == 0x20000 and per == 32 and chunk == 4096
    L = []
    c = lambda s, cm: L.append(f"{s:<64}; {cm}")
    if stamps:
        L.append("s_memrealtime s[40:41]")
        L.append("s_load_dwordx2 s[56:57], s[0:1], 40")
    c("s_load_dwordx2 s[4:5], s[0:1], 0", "x      -> SRD s[4:7]   words 0-1")
    c("s_load_dwordx2 s[8:9], s[0:1], 8", "fx     -> SRD s[8:11]  words 0-1")
    c("s_load_dwordx2 s[12:13], s[0:1], 24", "out    -> SRD s[12:15] words 0-1")
    c("s_load_dwordx2 s[20:21], s[0:1], 16", "alpha pointer")
    c("s_lshr_b32 s27, s2, 3", "r = wg >> 3")
    c("s_cmp_ge_u32 s27, 32", "workgroups past the data leave (uniform)")
    L.append("s_cbranch_scc1 L_end")
    c("s_and_b32 s26, s2, 7", "k = wg & 7")
    c("s_mulk_i32 s26, 448", "chunks per region")
    L.append("s_add_u32 s26, s26, s27")
    c("s_lshl_b32 s24, s26, 12", "byte offset of step 0 (load cursor)")
    if stamps:
        L.append("v_lshrrev_b32 v1, 6, v0")
    c("v_lshlrev_b32 v0, 4, v0", "lane byte offset inside the 4 KiB chunk")
    c(f"s_mov_b32 s6, {NBYTES}", "num_records = tensor bytes")
    c("s_mov_b32 s7, 0x20000", "SRD word 3; also the per-step stride (32 chunks * 4 KiB)")
    L.append("s_mov_b32 s10, s6")
    L.append("s_mov_b32 s11, s7")
    L.append("s_waitcnt lgkmcnt(0)")
    if stamps:
        L.append("s_memrealtime s[42:43]")
    base = 8
    xr = [base + 8 * j for j in range(D)]
    fr = [base + 8 * j + 4 for j in range(D)]
    ops = []

    def load(j):
        s_ = j % D
        L.append(f"buffer_load_dwordx4 v[{xr[s_]}:{xr[s_]+3}], v0, s[4:7], s24 offen{sfx(ld)}")
        L.append(f"buffer_load_dwordx4 v[{fr[s_]}:{fr[s_]+3}], v0, s[8:11], s24 offen{sfx(ld)}")
        ops.append(("L", j)); ops.append(("L", j))

    for j in range(D):
        if j:
            L.append("s_add_u32 s24, s24, s7")
        else:
            pass
        load(j)
        if j == 0:
            c("s_load_dword s16, s[20:21], 0", "alpha (bf16 in the low half)")
            c("s_mov_b32 s25, s24", "store cursor")
    L.append("s_mov_b32 s14, s6")
    L.append("s_mov_b32 s15, s7")
    L.append("s_mov_b32 s18, 0xffff0000")
    L.append("s_waitcnt lgkmcnt(0)")
    if stamps:
        L.append("s_memrealtime s[44:45]")
    c("s_lshl_b32 s16, s16, 16", "alpha as f32")
    for j in range(n):
        last = max(k for k, o in enumerate(ops) if o == ("L", j))
        cnt = len(ops) - 1 - last
        L.append(f"; ---- step {j}")
        L.append(f"s_waitcnt vmcnt({cnt})")
        if stamps and j == 0:
            L.append("s_memrealtime s[46:47]")
        if stamps and j == n - 1:
            L.append("s_memrealtime s[48:49]")
        s_ = j % D
        L += compute(xr[s_], fr[s_], 4)
        L.append(f"buffer_store_dwordx4 v[{xr[s_]}:{xr[s_]+3}], v0, s[12:15], s25 offen{sfx(st)}")
        ops.append(("S", j))
        if j + D < n:
            L.append("s_add_u32 s24, s24, s7")
            load(j + D)
        if j + 1 < n:
            L.append("s_add_u32 s25, s25, s7")
    nxt = 28
    if stamps:
        L += stamp_tail(block)
        nxt = 64
    L.append("L_end:")
    L.append("s_endpgm")
    vg = base + 8 * D
    s = HEADER.format(grid=grid, block=block, D=D)
    for l in L:
        s += (l if l.endswith(":") else "    " + l) + "\n"
    s += FOOTER.format(vgpr=vg, sgpr=nxt, accum=(vg + 3) // 4 * 4)
    return s, grid, block


if __name__ == "__main__":
    import argparse
    ap = argparse.ArgumentParser()
    ap.add_argument("--D", type=int, default=4)
    ap.add_argument("--stamps", action="store_true")
    ap.add_argument("-o", default="-")
    a = ap.parse_args()
    s, g, b = gen_final(a.D, stamps=a.stamps)
    if a.o == "-":
        print(s)
    else:
        open(a.o, "w").write(s)
```

```python
import sys

NBYTES = 1024 * 16 * 448 * 2

HEADER = """; Kernarg layout for this problem (48 bytes, ptrs only, base s[0:1]):
; @launch grid=(256,1,1) block=(256,1,1) lds=0
;
; Loads run {D} steps ahead of the arithmetic (nt: read-once data); stores are plain.
;            s19 step stride, v0 load offset, v2 store offset, v[4:19] temps, v[20:..] ring of {D} x/fx slots.
.amdgcn_target "amdgcn-amd-amdhsa--gfx950"
.text
.globl standalone__rezero__sampling_kernel
.p2align 8
.type standalone__rezero__sampling_kernel,@function
standalone__rezero__sampling_kernel:
"""

FOOTER = """.section .rodata,"a"
.p2align 6
.amdhsa_kernel standalone__rezero__sampling_kernel
  .amdhsa_next_free_vgpr {vgpr}
  .amdhsa_next_free_sgpr {sgpr}
  .amdhsa_accum_offset {accum}
  .amdhsa_group_segment_fixed_size 0
  .amdhsa_kernarg_size 48
  .amdhsa_user_sgpr_count 2
  .amdhsa_user_sgpr_kernarg_segment_ptr 1
  .amdhsa_system_sgpr_workgroup_id_x 1
  .amdhsa_float_denorm_mode_32 3
.end_amdhsa_kernel
"""


def compute(xr, fr, first=False):
    T, U = 4, 12
    rows = []
    for d in range(4):
        rows.append((f"v_lshlrev_b32 v{T+2*d}, 16, v{fr+d}", "fx low half -> f32"))
        rows.append((f"v_and_b32 v{T+2*d+1}, s18, v{fr+d}", "fx high half -> f32"))
    for d in range(4):
        rows.append((f"v_pk_mul_f32 v[{T+2*d}:{T+2*d+1}], v[{T+2*d}:{T+2*d+1}], s[16:17] op_sel_hi:[1,0]", "alpha * fx (both halves read s16)"))
    for d in range(4):
        rows.append((f"v_lshlrev_b32 v{U+2*d}, 16, v{xr+d}", "x low half -> f32"))
        rows.append((f"v_and_b32 v{U+2*d+1}, s18, v{xr+d}", "x high half -> f32"))
    for d in range(8):
        rows.append((f"v_cvt_pk_bf16_f32 v{T+d}, 0, v{T+d}", "round to bf16; in the high half it is the f32 value again"))
    for d in range(4):
        rows.append((f"v_pk_add_f32 v[{U+2*d}:{U+2*d+1}], v[{U+2*d}:{U+2*d+1}], v[{T+2*d}:{T+2*d+1}]", "x + t"))
    for d in range(4):
        rows.append((f"v_cvt_pk_bf16_f32 v{xr+d}, v{U+2*d}, v{U+2*d+1}", "round and pack"))
    out, seen = [], set()
    for ins, cm in rows:
        if first and cm not in seen:
            seen.add(cm)
            out.append(f"{ins:<60}; {cm}")
        else:
            out.append(ins)
    return out


def gen(D=4, n=14):
    L = []
    c = lambda s, cm: L.append(f"{s:<60}; {cm}")
    c("s_load_dwordx8 s[4:11], s[0:1], 0", "x, fx, alpha, out pointers")
    c("s_lshr_b32 s27, s2, 3", "r = wg >> 3")
    c("s_cmp_ge_u32 s27, 32", "workgroups past the data leave (uniform branch)")
    L.append("s_cbranch_scc1 L_end")
    c("s_and_b32 s26, s2, 7", "k = wg & 7")
    c("s_mulk_i32 s26, 448", "chunks per region")
    L.append("s_add_u32 s26, s26, s27")
    c("s_lshl_b32 s24, s26, 12", "byte offset of this workgroup's first chunk")
    c("v_lshl_add_u32 v0, v0, 4, s24", "+ 16 B per lane: load offset")
    c("s_mov_b32 s19, 0x20000", "32 chunks * 4 KiB per step")
    c("v_mov_b32 v2, v0", "store offset")
    L.append("s_waitcnt lgkmcnt(0)")
    c("s_load_dword s16, s[8:9], 0", "alpha: bf16 in the low half of the dword (ahead of the data burst)")
    base = 20
    xr = [base + 8 * j for j in range(D)]
    fr = [base + 8 * j + 4 for j in range(D)]
    ops = []

    def load(j):
        s_ = j % D
        L.append(f"global_load_dwordx4 v[{xr[s_]}:{xr[s_]+3}], v0, s[4:5] nt")
        L.append(f"global_load_dwordx4 v[{fr[s_]}:{fr[s_]+3}], v0, s[6:7] nt")
        ops.extend([("L", j), ("L", j)])

    for j in range(D):
        if j:
            L.append("v_add_u32 v0, s19, v0")
        load(j)
    L.append("s_mov_b32 s18, 0xffff0000")
    L.append("s_waitcnt lgkmcnt(0)")
    c("s_lshl_b32 s16, s16, 16", "alpha as f32")
    for j in range(n):
        last = max(k for k, o in enumerate(ops) if o == ("L", j))
        cnt = len(ops) - 1 - last
        L.append(f"s_waitcnt vmcnt({cnt})")
        s_ = j % D
        L += compute(xr[s_], fr[s_], first=(j == 0))
        L.append(f"global_store_dwordx4 v2, v[{xr[s_]}:{xr[s_]+3}], s[10:11]")
        ops.append(("S", j))
        if j + D < n:
            L.append("v_add_u32 v0, s19, v0")
            load(j + D)
        if j + 1 < n:
            L.append("v_add_u32 v2, s19, v2")
    L.append("L_end:")
    L.append("s_endpgm")
    vg = base + 8 * D
    s = HEADER.format(D=D)
    for l in L:
        s += (l if l.endswith(":") else "    " + l) + "\n"
    s += FOOTER.format(vgpr=vg, sgpr=28, accum=(vg + 3) // 4 * 4)
    return s


if __name__ == "__main__":
    D = int(sys.argv[2]) if len(sys.argv) > 2 else 4
    open(sys.argv[1], "w").write(gen(D))
```

```python
import sys
sys.path.insert(0, "gen")
from final2 import compute, FOOTER, NBYTES

HEADER = """; Kernarg layout for this problem (48 bytes, ptrs only, base s[0:1]):
; @launch grid=(256,1,1) block=(256,1,1) lds=0
;
;   P = {P}.
; Loads run {D} steps ahead of the arithmetic (nt: read-once data); stores are plain.
;            s19 step stride, v[4:19] temps, v[{OFF0}:{OFF1}] byte offset of each ring slot, v[{R0}:..] ring of {D} x/fx slots.
.amdgcn_target "amdgcn-amd-amdhsa--gfx950"
.text
.globl standalone__rezero__sampling_kernel
.p2align 8
.type standalone__rezero__sampling_kernel,@function
standalone__rezero__sampling_kernel:
"""

PATTERNS = {
    "none": [0] * 14,
    "b13": [2 * (j & 1) for j in range(14)],
    "gray2": [[0, 2, 3, 1][j & 3] for j in range(14)],
    "cnt2": [j & 3 for j in range(14)],
    "b13b": [2 * ((j >> 1) & 1) for j in range(14)],
    "mix5": [(j * 11) & 31 for j in range(14)],
    "mix5b": [0, 2, 5, 7, 8, 10, 13, 15, 16, 18, 21, 23, 24, 26],
}


def gen(D=4, n=14, pat="b13", stamps=None, ro=False):
    P = PATTERNS[pat]
    assert P[0] == 0 and len(P) == n
    L = []
    c = lambda s, cm: L.append(f"{s:<60}; {cm}")
    OFF = 20
    base = 20 + (D + 3) // 4 * 4
    if stamps == "prof":
        L += ["s_memrealtime s[60:61]", "s_load_dwordx2 s[62:63], s[0:1], 40", "v_lshrrev_b32 v1, 6, v0"]
    c("s_load_dwordx8 s[4:11], s[0:1], 0", "x, fx, alpha, out pointers")
    c("s_lshr_b32 s27, s2, 3", "r = wg >> 3")
    c("s_cmp_ge_u32 s27, 32", "workgroups past the data leave (uniform branch)")
    L.append("s_cbranch_scc1 L_end")
    c("s_and_b32 s26, s2, 7", "k = wg & 7")
    c("s_mulk_i32 s26, 448", "chunks per region")
    L.append("s_add_u32 s26, s26, s27")
    c("s_lshl_b32 s24, s26, 12", "byte offset of this workgroup's first chunk")
    c(f"v_lshl_add_u32 v{OFF}, v0, 4, s24", "+ 16 B per lane: offset of step 0")
    c("s_mov_b32 s19, 0x20000", "32 chunks * 4 KiB per step")
    L.append("s_waitcnt lgkmcnt(0)")
    c("s_load_dword s16, s[8:9], 0", "alpha: bf16 in the low half of the dword (ahead of the data burst)")
    xr = [base + 8 * j for j in range(D)]
    fr = [base + 8 * j + 4 for j in range(D)]
    ops = []

    def advance(j):
        prev, cur = OFF + (j - 1) % D, OFF + j % D
        L.append(f"v_add_u32 v{cur}, s19, v{prev}")
        x = (P[j] ^ P[j - 1]) << 12
        if x:
            L.append(f"v_xor_b32 v{cur}, {hex(x)}, v{cur}")

    def load(j):
        s_ = j % D
        L.append(f"global_load_dwordx4 v[{xr[s_]}:{xr[s_]+3}], v{OFF+s_}, s[4:5] nt")
        L.append(f"global_load_dwordx4 v[{fr[s_]}:{fr[s_]+3}], v{OFF+s_}, s[6:7] nt")
        ops.extend([("L", j), ("L", j)])

    for j in range(D):
        if j:
            advance(j)
        load(j)
    L.append("s_mov_b32 s18, 0xffff0000")
    L.append("s_waitcnt lgkmcnt(0)")
    c("s_lshl_b32 s16, s16, 16", "alpha as f32")
    for j in range(n):
        last = max(k for k, o in enumerate(ops) if o == ("L", j))
        cnt = len(ops) - 1 - last
        L.append(f"s_waitcnt vmcnt({cnt})")
        if stamps == "prof":
            L.append(f"s_memrealtime s[{32+2*j}:{33+2*j}]")
        s_ = j % D
        L += compute(xr[s_], fr[s_], first=(j == 0))
        if not ro:
            L.append(f"global_store_dwordx4 v{OFF+s_}, v[{xr[s_]}:{xr[s_]+3}], s[10:11]")
            ops.append(("S", j))
        if j + D < n:
            advance(j + D)
            load(j + D)
    sg = 28
    if stamps == "prof":
        tail = ["s_waitcnt vmcnt(0)", "s_memrealtime s[64:65]", "s_lshl_b32 s67, s2, 2", "v_add_u32 v1, s67, v1", "v_lshlrev_b32 v1, 6, v1", "s_waitcnt lgkmcnt(0)"]
        vals = [60] + [32 + 2 * k for k in range(14)] + [64]
        tail += [f"v_mov_b32 v{4+i}, s{v}" for i, v in enumerate(vals)]
        tail += ["s_mov_b64 exec, 1"]
        tail += [f"global_store_dwordx4 v1, v[{4+4*q}:{7+4*q}], s[62:63] offset:{16*q}" for q in range(4)]
        L += tail
        sg = 72
    L.append("L_end:")
    L.append("s_endpgm")
    vg = base + 8 * D
    s = HEADER.format(D=D, P=P, OFF0=OFF, OFF1=OFF + D - 1, R0=base)
    for l in L:
        s += (l if l.endswith(":") else "    " + l) + "\n"
    s += FOOTER.format(vgpr=vg, sgpr=sg, accum=(vg + 3) // 4 * 4)
    return s


if __name__ == "__main__":
    D = int(sys.argv[2]) if len(sys.argv) > 2 else 4
    pat = sys.argv[3] if len(sys.argv) > 3 else "b13"
    open(sys.argv[1], "w").write(gen(D, pat=pat))
```
